```python
import torch

def _softmax(x, axis=-1):
    return torch.softmax(x, dim=axis)
def _gelu(x):
    return torch.nn.functional.gelu(x, approximate="tanh")
def _silu(x):
    return torch.nn.functional.silu(x)
def _sigmoid(x):
    return torch.sigmoid(x)
def _layernorm(x, axis=-1, eps=1e-5):
    m = x.mean(dim=axis, keepdim=True)
    v = x.var(dim=axis, keepdim=True, unbiased=False)
    return (x - m) / torch.sqrt(v + eps)
def _scatter_add(tgt, idx, src, axis=0):
    return tgt.clone().index_add_(axis, idx, src)
def _segment_sum(src, seg, n):
    out = torch.zeros((n,) + src.shape[1:], dtype=src.dtype)
    return out.index_add_(0, seg, src)
def _pad(x, pw):
    flat = tuple(v for pair in reversed(pw) for v in pair)
    return torch.nn.functional.pad(x, flat)

kernel_name = 'standalone__sliding_block_cached__sampling'

def setup_inputs():

    _w = (lambda a: (lambda t: t.to(torch.bfloat16) if t.is_floating_point() else t)(torch.as_tensor(a)))
    B, Sq, D = 32, 1, 1024
    Hq, Hkv, Sk, Dh = 32, 4, 2048, 128
    assert Hq % Hkv == 0, (Hq, Hkv)
    return {
        "x": _w((lambda *s: torch.randn(*s, dtype=torch.bfloat16) * 0.8)(B, Sq, D)),
        "k_cache": _w((lambda *s: torch.randn(*s, dtype=torch.bfloat16) * 0.8)(B, Hkv, Sk, Dh)),
        "v_cache": _w((lambda *s: torch.randn(*s, dtype=torch.bfloat16) * 0.05)(B, Hkv, Sk, Dh)),
        "wq": _w((lambda *s: torch.randn(*s, dtype=torch.bfloat16) * 0.8)(D, Hq * Dh) * (D ** -0.5)),
        "wo": _w((lambda *s: torch.randn(*s, dtype=torch.bfloat16) * 0.05)(Hq * Dh, D) * ((Hq * Dh) ** -0.5)),
    }

def reference(x, k_cache, v_cache, wq, wo):
    B, Sq, D = x.shape
    Hq, Dh = 32, 128
    Hkv, Sk = k_cache.shape[1], k_cache.shape[2]
    W = min(4096, max(256, Sk // 4))
    rep = Hq // Hkv
    q = (lambda x, *d: x.permute(*d))((x @ wq).reshape(B, Sq, Hq, Dh), 0, 2, 1, 3)
    k = (lambda x, n, axis: torch.repeat_interleave(x, n, dim=axis))(k_cache[:, :, Sk - W:, :], rep, axis=1)
    v = (lambda x, n, axis: torch.repeat_interleave(x, n, dim=axis))(v_cache[:, :, Sk - W:, :], rep, axis=1)
    scores = torch.einsum("bhqd,bhkd->bhqk", q, k) * (Dh ** -0.5)
    p = _softmax(scores, axis=-1)
    o = torch.einsum("bhqk,bhkd->bhqd", p, v)
    return (lambda x, *d: x.permute(*d))(o, 0, 2, 1, 3).reshape(B, Sq, Hq * Dh) @ wo
```

```python
import sys

KN = "standalone__sliding_block_cached__sampling_kernel"

import os
WS_B   = int(os.environ.get("WSB", "0"), 0)
def set_base(b):
    global WS_B, WS_E, WS_CF, WS_QI, WS_OS, WS_ML, WS_PS, WS_ST
    WS_B = b
    WS_E   = WS_B + 0x0
    WS_CF  = WS_B + 0x1000
    WS_QI  = WS_B + 0x100000
    WS_OS  = WS_B + 0x300000
    WS_ML  = WS_B + 0x380000
    WS_PS  = WS_B + 0x400000
    WS_ST  = WS_B + 0x800000
set_base(WS_B)
TAG_G  = 0x9E3779B9

L_K   = 0
L_WO  = 0
L_V   = 65536
L_X   = 81920
L_WQ  = 98304
L_SC  = 131072
L_FLG = L_SC
L_QS  = L_SC + 256
L_MLS = L_QS + 2048
L_PP  = L_MLS + 512
L_OST = L_PP + 8192
L_END = L_OST + 16384
assert L_END <= 163840
F_PROG, F_QP, F_Q, F_KD, F_ML, F_P, F_O = [4*i for i in range(7)]

SCALE_LOG2E = 128 ** -0.5 * 1.4426950408889634

import struct
def f2u(x): return struct.unpack("<I", struct.pack("<f", x))[0]

class G:
    def __init__(self, W=32, stamps=False, nt="nt", xflags="", sleep_q=4, prefetch=True, budget=400000, stop_after=None, hint_q=False, hint_o=False, q_trig=112, ack_o=True, ack_p=True):
        self.L = []
        self.W = W; self.stamps = stamps; self.nt = nt; self.xflags = xflags
        self.sleep_q = sleep_q; self.prefetch = prefetch; self.budget = budget
        self.nlab = 0
        self.stop_after = stop_after
        self.hint_q = hint_q; self.hint_o = hint_o
        self.q_trig = q_trig; self.ack_o = ack_o; self.ack_p = ack_p
        self.nstamp = 0
    def e(self, s): self.L.append("  " + s)
    def lab(self, s): self.L.append(s + ":")
    def newlab(self, p="L"):
        self.nlab += 1
        return "%s_%d" % (p, self.nlab)
    def stamp(self, idx):
        if self.stamps:
            self.e("s_memrealtime s[%d:%d]" % (72 + 2*idx, 73 + 2*idx))

    def wait_lds(self, off, thr, vt="v2", st="s27"):
        l = self.newlab("W"); d = self.newlab("WD")
        self.lab(l)
        self.e("ds_read_b32 %s, v1 offset:%d" % (vt, off))
        self.e("s_waitcnt lgkmcnt(0)")
        self.e("v_readfirstlane_b32 %s, %s" % (st, vt))
        self.e("s_cmp_ge_u32 %s, %s" % (st, thr))
        self.e("s_cbranch_scc1 %s" % d)
        self.e("s_sub_u32 s26, s26, 1")
        self.e("s_cbranch_scc0 %s" % l)
        self.e("s_mov_b32 s26, 0")
        self.lab(d)
    def arrive(self, off):
        self.e("s_mov_b64 exec, 1")
        self.e("ds_add_u32 v1, v3 offset:%d" % off)
        self.e("s_mov_b64 exec, -1")

    def srd(self, d, p, size):
        self.e("s_mov_b32 s%d, s%d" % (d, p))
        self.e("s_and_b32 s%d, s%d, 0xffff" % (d+1, p+1))
        self.e("s_mov_b32 s%d, 0x%x" % (d+2, size))
        self.e("s_mov_b32 s%d, 0x20000" % (d+3))

    def roles(self):
        e = self.e
        e("s_and_b32 s65, s2, 7")
        e("s_lshr_b32 s66, s2, 3")
        e("s_and_b32 s58, s66, 1")
        e("s_lshr_b32 s67, s66, 1")
        e("s_lshl_b32 s68, s67, 3")
        e("s_add_u32 s68, s68, s65")
        e("s_and_b32 s57, s68, 3")
        e("s_lshr_b32 s56, s68, 2")
        e("s_and_b32 s59, s2, 63")
        e("s_lshr_b32 s60, s2, 6")
        e("s_lshl_b32 s64, s65, 1")
        e("s_add_u32 s64, s64, s58")
        e("s_lshr_b32 s61, s65, 1")
        e("s_and_b32 s62, s64, 3")
        e("s_mov_b32 s63, s67")

    def gen(self):
        e = self.e; W = self.W
        H = []
        H.append("; @launch grid=(256,1,1) block=(576,1,1) lds=163840")
        H.append('.amdgcn_target "amdgcn-amd-amdhsa--gfx950"')
        H.append(".text")
        H.append(".globl %s" % KN)
        H.append(".p2align 8")
        H.append(".type %s,@function" % KN)
        H.append("%s:" % KN)
        self.L = H
        e("s_cmp_ge_u32 s2, 256")
        e("s_cbranch_scc1 L_end")
        self.stamp(0)
        e("s_load_dwordx16 s[8:23], s[0:1], 0")
        e("v_lshrrev_b32 v1, 6, v0")
        e("v_and_b32 v0, 63, v0")
        e("s_mov_b32 s26, %d" % self.budget)
        e("v_readfirstlane_b32 s3, v1")
        self.roles()
        e("s_cmp_eq_u32 s3, 8")
        e("s_cbranch_scc1 L_loader")
        self.worker()
        self.loader()
        self.lab("L_end")
        e("s_endpgm")
        self.lab("L_code_end")
        T = []
        T.append('.section .rodata,"a"')
        T.append(".p2align 6")
        T.append(".amdhsa_kernel %s" % KN)
        T.append("  .amdhsa_next_free_vgpr 128")
        T.append("  .amdhsa_next_free_sgpr 102")
        T.append("  .amdhsa_accum_offset 128")
        T.append("  .amdhsa_group_segment_fixed_size 0")
        T.append("  .amdhsa_kernarg_size 64")
        T.append("  .amdhsa_user_sgpr_count 2")
        T.append("  .amdhsa_user_sgpr_kernarg_segment_ptr 1")
        T.append("  .amdhsa_system_sgpr_workgroup_id_x 1")
        T.append(".end_amdhsa_kernel")
        return "\n".join(self.L + T) + "\n"

    def loader(self):
        e = self.e; W = self.W; nt = self.nt
        self.lab("L_loader")
        e("v_lshrrev_b32 v2, 5, v0")
        e("v_and_b32 v3, 31, v0")
        e("v_xor_b32 v3, v3, v2")
        e("v_lshlrev_b32 v3, 4, v3")
        e("v_lshl_or_b32 v10, v2, 11, v3")
        e("v_and_b32 v2, 7, v0")
        e("v_bfe_u32 v3, v0, 4, 1")
        e("v_lshlrev_b32 v3, 1, v3")
        e("v_xor_b32 v2, v2, v3")
        e("v_lshlrev_b32 v2, 4, v2")
        e("v_lshrrev_b32 v3, 3, v0")
        e("v_lshl_or_b32 v11, v3, 13, v2")
        e("v_xor_b32 v12, 64, v11")
        e("v_lshl_or_b32 v13, v3, 11, v2")
        e("v_xor_b32 v14, 64, v13")
        e("v_lshrrev_b32 v2, 4, v0")
        e("v_and_b32 v3, 15, v0")
        e("v_xor_b32 v4, v3, v2")
        e("v_lshlrev_b32 v4, 4, v4")
        e("v_lshl_or_b32 v16, v2, 8, v4")
        e("v_xor_b32 v17, 64, v16")
        e("v_xor_b32 v18, 0x80, v16")
        e("v_xor_b32 v19, 0xc0, v16")
        e("v_lshlrev_b32 v4, 1, v2")
        e("v_xor_b32 v4, v3, v4")
        e("v_lshlrev_b32 v4, 4, v4")
        e("v_lshl_or_b32 v20, v2, 8, v4")
        e("v_xor_b32 v21, 0x80, v20")
        e("v_mov_b32 v1, %d" % L_FLG)
        e("s_lshl_b32 s66, s60, 9")
        e("s_lshl_b32 s67, s60, 21")
        e("s_lshl_b32 s68, s59, 7")
        e("s_add_u32 s67, s67, s68")
        e("s_lshl_b32 s68, s56, 2")
        e("s_add_u32 s68, s68, s57")
        e("s_lshl_b32 s68, s68, 19")
        e("s_lshl_b32 s69, s58, 16")
        e("s_add_u32 s68, s68, s69")
        e("s_add_u32 s68, s68, 0x%x" % (1536*256))
        e("s_lshl_b32 s69, s61, 21")
        e("s_lshl_b32 s70, s62, 16")
        e("s_add_u32 s69, s69, s70")
        e("s_lshl_b32 s70, s63, 7")
        e("s_add_u32 s69, s69, s70")
        e("s_waitcnt lgkmcnt(0)")
        self.srd(28, 8, 65536)
        self.srd(32, 14, 1 << 23)
        self.srd(36, 10, 1 << 26)
        self.srd(40, 12, 1 << 26)
        self.srd(44, 16, 1 << 23)
        cnt = [0]
        def pace():
            g = cnt[0] // 4
            if cnt[0] >= W:
                e("s_waitcnt vmcnt(%d)" % (W - 4))
                e("v_mov_b32 v2, %d" % (cnt[0] + 4))
                e("ds_write_b32 v1, v2 offset:%d" % F_PROG)
        def dma(voff, srd, soff, m0, imm=0, fl=nt):
            e("buffer_load_dwordx4 %s, s[%d:%d], %s offen %s%s lds" % (voff, srd, srd+3, soff, ("offset:%d " % imm) if imm else "", fl))
            cnt[0] += 1
        barrier_done = [False]
        def maybe_barrier():
            if not barrier_done[0] and cnt[0] >= W:
                e("s_barrier")
                barrier_done[0] = True
        for i in range(16):
            if i % 4 == 0:
                maybe_barrier(); pace()
            e("s_add_u32 s71, s66, 0x%x" % (2*i*2048))
            e("s_mov_b32 m0, 0x%x" % (L_X + i*1024))
            e("v_xor_b32 v22, 0x%x, v10" % (((2*i) & 15) << 4))
            dma("v22", 28, "s71", None, fl=self.xflags)
        for i in range(32):
            if i % 4 == 0:
                maybe_barrier(); pace()
            e("s_add_u32 s71, s67, 0x%x" % (i*8*8192))
            e("s_mov_b32 m0, 0x%x" % (L_WQ + i*1024))
            e("s_nop 0")
            dma("v11" if i % 2 == 0 else "v12", 32, "s71", None)
        self.stamp(1)
        for gi in range(16):
            maybe_barrier(); pace()
            e("s_add_u32 s71, s68, 0x%x" % (gi*4096))
            e("s_mov_b32 m0, 0x%x" % (L_K + gi*4096))
            e("s_nop 0")
            for a in range(4):
                dma("v%d" % (16 + a), 36, "s71", None, imm=a*1024)
        self.stamp(2)
        for gi in range(16):
            if gi == 4:
                self.wait_lds(F_QP, 8)
            maybe_barrier(); pace()
            e("s_add_u32 s71, s68, 0x%x" % (gi*4096))
            e("s_mov_b32 m0, 0x%x" % (L_V + gi*4096))
            e("s_nop 0")
            for a in range(4):
                dma("v%d" % (20 + (a & 1)), 40, "s71", None, imm=a*1024)
        self.stamp(3)
        self.wait_lds(F_KD, 8)
        for i in range(32):
            if i % 4 == 0:
                pace()
            rel = (((i >> 1) & 7)*128 + 16*(i >> 4) + 8*(i & 1)) * 2048
            e("s_add_u32 s71, s69, 0x%x" % rel)
            e("s_mov_b32 m0, 0x%x" % (L_WO + i*1024))
            e("s_nop 0")
            dma("v13" if i % 2 == 0 else "v14", 44, "s71", None)
        self.stamp(4)
        total = cnt[0]
        assert total == 208
        for n in range(W - 4, -1, -4):
            e("s_waitcnt vmcnt(%d)" % n)
            e("v_mov_b32 v2, %d" % (total - n + W))
            e("ds_write_b32 v1, v2 offset:%d" % F_PROG)
        self.stamp(5)
        self.write_stamps()
        e("s_endpgm")

    def write_stamps(self):
        if not self.stamps: return
        e = self.e
        e("s_waitcnt lgkmcnt(0)")
        e("s_lshl_b32 s4, s2, 4")
        e("s_add_u32 s4, s4, s3")
        e("s_lshl_b32 s4, s4, 7")
        e("s_add_u32 s4, s4, 0x%x" % WS_ST)
        e("s_add_u32 s6, s22, s4")
        e("s_addc_u32 s7, s23, 0")
        e("s_getreg_b32 s5, hwreg(HW_REG_XCC_ID)")
        e("s_mov_b64 exec, 1")
        e("v_mov_b32 v5, 0")
        for i in range(14):
            e("v_mov_b32 v4, s%d" % (72 + 2*i))
            e("global_store_dword v5, v4, s[6:7] offset:%d" % (4*i))
        e("v_mov_b32 v4, s5")
        e("global_store_dword v5, v4, s[6:7] offset:60")
        for i, r in enumerate((100, 101, 71)):
            e("v_mov_b32 v4, s%d" % r)
            e("global_store_dword v5, v4, s[6:7] offset:%d" % (64 + 4*i))
        e("s_mov_b64 exec, -1")

    def proj(self, Lw, La, thr_fn, arrive_off=None):
        e = self.e
        e("v_and_b32 v4, 15, v0")
        e("v_lshrrev_b32 v5, 4, v0")
        e("v_lshrrev_b32 v6, 2, v4")
        e("v_lshl_add_u32 v6, v5, 3, v6")
        e("v_lshlrev_b32 v6, 7, v6")
        e("v_bfe_u32 v7, v4, 1, 1")
        e("s_lshr_b32 s27, s3, 1")
        e("s_lshl_b32 s27, s27, 1")
        e("v_add_u32 v7, s27, v7")
        e("v_bfe_u32 v12, v4, 3, 1")
        e("v_and_b32 v13, 1, v5")
        e("v_lshl_or_b32 v12, v13, 1, v12")
        e("v_lshlrev_b32 v12, 1, v12")
        e("v_xor_b32 v7, v7, v12")
        e("v_lshl_add_u32 v6, v7, 4, v6")
        e("v_and_b32 v7, 1, v4")
        e("v_lshl_add_u32 v6, v7, 3, v6")
        e("v_add_u32 v6, 0x%x, v6" % Lw)
        e("s_and_b32 s27, s3, 1")
        e("s_lshl_b32 s27, s27, 4")
        e("v_add_u32 v7, s27, v4")
        e("v_lshlrev_b32 v7, 9, v7")
        e("v_xor_b32 v12, v5, v4")
        e("v_lshl_add_u32 v7, v12, 4, v7")
        e("v_add_u32 v8, 0x%x, v7" % La)
        e("v_xor_b32 v9, 64, v8")
        e("v_xor_b32 v10, 0x80, v8")
        e("v_xor_b32 v11, 0xc0, v8")

    def proj_compute(self, waits):
        e = self.e
        for s in range(8):
            e("ds_read_b128 v[%d:%d], v%d offset:%d" % (64+4*s, 67+4*s, 8 + (s & 3), (s >> 2)*256))
        for s in range(8):
            if waits.get(s): waits[s]()
            e("ds_read_b64_tr_b16 v[%d:%d], v6 offset:%d" % (32+4*s, 33+4*s, 4096*s))
            e("ds_read_b64_tr_b16 v[%d:%d], v6 offset:%d" % (34+4*s, 35+4*s, 4096*s + 512))
        e("s_waitcnt lgkmcnt(0)")
        for s in range(8):
            e("v_mfma_f32_16x16x32_bf16 v[28:31], v[%d:%d], v[%d:%d], %s" % (32+4*s, 35+4*s, 64+4*s, 67+4*s, "0" if s == 0 else "v[28:31]"))

    def xlane(self, op, a, t, bit):
        e = self.e
        e("v_mov_b32 %s, %s" % (t, a))
        e("s_nop 1")
        e("v_permlane%d_swap_b32 %s, %s" % (bit, a, t))
        e("%s %s, %s, %s" % (op, a, a, t))

    def worker(self):
        e = self.e; W = self.W
        e("v_mov_b32 v1, %d" % L_FLG)
        e("v_mov_b32 v3, 1")
        e("s_cmp_eq_u32 s3, 0")
        l0 = self.newlab("P")
        e("s_cbranch_scc0 %s" % l0)
        e("v_lshl_add_u32 v4, v0, 2, v1")
        e("v_mov_b32 v5, 0")
        e("ds_write_b32 v4, v5")
        self.lab(l0)
        e("s_waitcnt lgkmcnt(0)")
        self.srd(48, 22, 1 << 28)
        self.srd(52, 18, 65536)
        e("s_add_u32 s4, s22, 0x%x" % WS_E)
        e("s_addc_u32 s5, s23, 0")
        e("s_load_dword s24, s[4:5], 0")
        e("s_lshl_b32 s65, s57, 5")
        e("s_add_u32 s65, s65, s56")
        e("s_lshl_b32 s65, s65, 1")
        e("s_add_u32 s65, s65, s58")
        e("s_cmp_eq_u32 s3, 0")
        l1 = self.newlab("P")
        e("s_cbranch_scc0 %s" % l1)
        e("s_lshl_b32 s27, s65, 11")
        e("s_add_u32 s27, s27, 0x%x" % WS_OS)
        e("v_lshlrev_b32 v4, 4, v0")
        e("v_add_u32 v4, s27, v4")
        for r in range(4): e("v_mov_b32 v%d, -1" % (8 + r))
        e("buffer_store_dwordx4 v[8:11], v4, s[48:51], 0 offen sc1")
        e("buffer_store_dwordx4 v[8:11], v4, s[48:51], 0 offen offset:1024 sc1")
        self.lab(l1)
        if self.prefetch:
            e("s_cmp_eq_u32 s3, 1")
            l2 = self.newlab("P")
            e("s_cbranch_scc0 %s" % l2)
            e("s_getpc_b64 s[4:5]")
            self.lab("L_pc")
            e("v_lshlrev_b32 v4, 7, v0")
            e("s_mov_b32 s27, L_code_end-L_pc-4")
            for j in range(2):
                e("v_min_u32 v5, s27, v4")
                e("global_load_dword v%d, v5, s[4:5]" % (126 + j))
                e("v_add_u32 v4, 0x2000, v4")
            self.lab(l2)
        e("s_barrier")
        e("s_waitcnt lgkmcnt(0)")
        e("s_add_u32 s24, s24, 0x%x" % TAG_G)
        e("s_and_b32 s25, s24, 0xff")
        e("s_cmp_eq_u32 s3, 0")
        l3 = self.newlab("P")
        e("s_cbranch_scc0 %s" % l3)
        e("s_lshl_b32 s27, s65, 2")
        e("s_add_u32 s27, s27, 0x%x" % WS_CF)
        e("v_mov_b32 v4, s27")
        e("v_mov_b32 v5, s24")
        e("s_waitcnt vmcnt(0)")
        e("s_mov_b64 exec, 1")
        e("buffer_store_dword v5, v4, s[48:51], 0 offen sc1")
        e("s_mov_b64 exec, -1")
        self.lab(l3)
        self.stamp(1)
        self.proj(L_WQ, L_X, None)
        e("s_lshr_b32 s66, s59, 4")
        e("s_lshl_b32 s66, s66, 14")
        e("s_lshl_b32 s67, s60, 12")
        e("s_add_u32 s66, s66, s67")
        e("s_and_b32 s67, s59, 15")
        e("s_lshl_b32 s67, s67, 8")
        e("s_add_u32 s66, s66, s67")
        e("s_lshr_b32 s67, s3, 1")
        e("s_lshl_b32 s67, s67, 6")
        e("s_add_u32 s66, s66, s67")
        e("s_and_b32 s67, s3, 1")
        e("s_lshl_b32 s67, s67, 20")
        e("s_add_u32 s66, s66, s67")
        e("s_add_u32 s66, s66, 0x%x" % WS_QI)
        e("v_lshlrev_b32 v14, 16, v4")
        e("v_lshl_add_u32 v14, v5, 4, v14")
        e("v_add_u32 v14, s66, v14")
        e("v_mov_b32 v15, s25")
        e("s_mov_b32 s70, 0xffffff00")
        self.wait_lds(F_PROG, 48 + W)
        self.stamp(2)
        self.proj_compute({})
        self.arrive(F_QP)
        e("s_nop 7")
        for r in range(4): e("v_and_or_b32 v%d, v%d, s70, v15" % (28+r, 28+r))
        e("buffer_store_dwordx4 v[28:31], v14, s[48:51], 0 offen sc1")
        self.stamp(3)
        if self.stop_after == "qproj": return self.finish()
        e("v_xor_b32 v7, v4, v5")
        e("v_lshlrev_b32 v7, 4, v7")
        e("v_lshl_or_b32 v7, v4, 8, v7")
        e("s_lshl_b32 s27, s3, 13")
        e("v_add_u32 v8, s27, v7")
        e("v_xor_b32 v9, 64, v8")
        e("v_xor_b32 v10, 0x80, v8")
        e("v_xor_b32 v11, 0xc0, v8")
        e("s_lshl_b32 s66, s3, 3")
        e("s_add_u32 s66, s66, %d" % (48 + 8 + W))
        self.wait_lds(F_PROG, "s66")
        for t in range(2):
            for s in range(4):
                e("ds_read_b128 v[%d:%d], v%d offset:%d" % (32+16*t+4*s, 35+16*t+4*s, 8+s, 4096*t))
        e("s_waitcnt lgkmcnt(0)")
        self.arrive(F_KD)
        e("s_lshl_b32 s66, s56, 2")
        e("s_add_u32 s66, s66, s57")
        e("s_lshl_b32 s66, s66, 14")
        e("s_lshl_b32 s67, s3, 9")
        e("s_add_u32 s66, s66, s67")
        e("s_add_u32 s66, s66, 0x%x" % WS_QI)
        e("s_add_u32 s4, s22, s66")
        e("s_addc_u32 s5, s23, 0")
        e("v_lshrrev_b32 v4, 5, v0")
        e("v_and_b32 v5, 31, v0")
        e("v_lshlrev_b32 v6, 4, v5")
        e("v_lshl_or_b32 v6, v4, 12, v6")
        e("v_add_u32 v6, s66, v6")
        e("s_mov_b32 s67, 0x2000")
        e("s_lshl_b32 s66, s61, 6")
        e("s_lshl_b32 s68, s3, 3")
        e("s_add_u32 s66, s66, s68")
        e("s_lshl_b32 s66, s66, 2")
        e("s_add_u32 s66, s66, 0x%x" % WS_CF)
        e("v_and_b32 v10, 7, v0")
        e("v_lshl_add_u32 v10, v10, 2, s66")
        e("v_lshrrev_b32 v7, 1, v5")
        e("s_lshl_b32 s27, s3, 1")
        e("v_xor_b32 v7, s27, v7")
        e("v_lshlrev_b32 v7, 4, v7")
        e("v_and_b32 v8, 1, v5")
        e("v_lshl_or_b32 v7, v8, 3, v7")
        e("s_lshl_b32 s27, s3, 8")
        e("s_add_u32 s27, s27, %d" % L_QS)
        e("v_add_u32 v7, s27, v7")
        if self.q_trig:
            self.wait_lds(F_PROG, self.q_trig + W)
        if self.hint_q:
            lh = self.newlab("H"); lhd = self.newlab("HD")
            self.lab(lh)
            for ks in range(4):
                for c in range(2):
                    e("s_load_dword s%d, s[4:5], 0x%x glc" % (28 + 2*ks + c, ks*4096 + c*256))
            e("s_waitcnt lgkmcnt(0)")
            e("s_xor_b32 s36, s28, s25")
            for i in range(1, 8):
                e("s_xor_b32 s37, s%d, s25" % (28 + i))
                e("s_or_b32 s36, s36, s37")
            e("s_and_b32 s36, s36, 0xff")
            e("s_cbranch_scc0 %s" % lhd)
            e("s_sub_u32 s26, s26, 1")
            e("s_cbranch_scc0 %s" % lh)
            e("s_mov_b32 s26, 0")
            self.lab(lhd)
        lq = self.newlab("Q"); lqd = self.newlab("QD")
        if self.stamps: e("s_mov_b32 s100, 0")
        self.lab(lq)
        if self.stamps: e("s_add_u32 s100, s100, 1")
        e("buffer_load_dwordx4 v[16:19], v6, s[48:51], 0 offen sc1")
        e("buffer_load_dwordx4 v[20:23], v6, s[48:51], s67 offen sc1")
        e("buffer_load_dword v11, v10, s[48:51], 0 offen sc1")
        e("s_waitcnt vmcnt(0)")
        e("v_xor_b32 v8, v16, v15")
        for r in range(17, 24): e("v_bitop3_b32 v8, v8, v%d, v15 bitop3:0xf6" % r)
        e("v_and_b32 v8, 0xff, v8")
        e("v_bitop3_b32 v8, v8, v11, s24 bitop3:0xf6")
        e("v_cmp_ne_u32 vcc, 0, v8")
        e("s_cbranch_vccz %s" % lqd)
        if self.sleep_q: e("s_sleep %d" % self.sleep_q)
        e("s_sub_u32 s26, s26, 1")
        e("s_cbranch_scc0 %s" % lq)
        e("s_mov_b32 s26, 0")
        self.lab(lqd)
        for r in range(4): e("v_add_f32 v%d, v%d, v%d" % (16+r, 16+r, 20+r))
        for r in range(4): e("v_mov_b32 v%d, v%d" % (20+r, 16+r))
        e("s_nop 0")
        for r in range(4): e("v_permlane32_swap_b32 v%d, v%d" % (16+r, 20+r))
        for r in range(4): e("v_add_f32 v%d, v%d, v%d" % (16+r, 16+r, 20+r))
        e("v_cvt_pk_bf16_f32 v16, v16, v17")
        e("v_cvt_pk_bf16_f32 v17, v18, v19")
        e("ds_write_b64 v7, v[16:17]")
        e("v_and_b32 v4, 15, v0")
        e("v_lshrrev_b32 v5, 4, v0")
        e("v_and_b32 v6, 7, v4")
        e("v_lshlrev_b32 v7, 1, v6")
        e("v_xor_b32 v7, v7, v5")
        e("v_lshlrev_b32 v7, 4, v7")
        e("v_lshl_or_b32 v7, v6, 8, v7")
        e("v_add_u32 v8, %d, v7" % L_QS)
        assert L_QS % 256 == 0
        e("v_xor_b32 v9, 64, v8")
        e("v_xor_b32 v10, 0x80, v8")
        e("v_xor_b32 v11, 0xc0, v8")
        e("s_waitcnt lgkmcnt(0)")
        self.arrive(F_Q)
        self.stamp(4)
        self.wait_lds(F_Q, 8)
        self.stamp(5)
        for s in range(4):
            e("ds_read_b128 v[%d:%d], v%d" % (64+4*s, 67+4*s, 8+s))
        e("s_waitcnt lgkmcnt(0)")
        for s in range(4):
            for t in range(2):
                e("v_mfma_f32_16x16x32_bf16 v[%d:%d], v[%d:%d], v[%d:%d], %s" % (16+4*t, 19+4*t, 32+16*t+4*s, 35+16*t+4*s, 64+4*s, 67+4*s, "0" if s == 0 else "v[%d:%d]" % (16+4*t, 19+4*t)))
        e("s_mov_b32 s66, 0x%x" % f2u(SCALE_LOG2E))
        e("s_nop 6")
        e("v_max3_f32 v24, v16, v17, v18")
        e("v_max3_f32 v24, v24, v19, v20")
        e("v_max3_f32 v24, v24, v21, v22")
        e("v_max_f32 v24, v24, v23")
        self.xlane("v_max_f32", "v24", "v25", 16)
        self.xlane("v_max_f32", "v24", "v25", 32)
        e("v_mul_f32 v24, s66, v24")
        for r in range(8): e("v_fma_f32 v%d, v%d, s66, -v24" % (16+r, 16+r))
        for r in range(8): e("v_exp_f32 v%d, v%d" % (16+r, 16+r))
        e("s_nop 0")
        e("v_add_f32 v25, v16, v17")
        e("v_add_f32 v26, v18, v19")
        e("v_add_f32 v27, v20, v21")
        e("v_add_f32 v28, v22, v23")
        e("v_add_f32 v25, v25, v26")
        e("v_add_f32 v27, v27, v28")
        e("v_add_f32 v25, v25, v27")
        self.xlane("v_add_f32", "v25", "v26", 16)
        self.xlane("v_add_f32", "v25", "v26", 32)
        e("s_lshl_b32 s27, s3, 6")
        e("s_add_u32 s27, s27, %d" % L_MLS)
        e("v_lshl_add_u32 v6, v0, 3, s27")
        e("s_mov_b64 exec, 0xff")
        e("ds_write_b64 v6, v[24:25]")
        e("s_mov_b64 exec, -1")
        e("s_waitcnt lgkmcnt(0)")
        self.arrive(F_ML)
        self.wait_lds(F_ML, 8)
        e("v_lshlrev_b32 v6, 3, v0")
        e("v_add_u32 v6, %d, v6" % L_MLS)
        e("ds_read_b64 v[26:27], v6")
        e("s_waitcnt lgkmcnt(0)")
        e("v_max_f32_dpp v28, v26, v26 row_ror:8 row_mask:0xf bank_mask:0xf")
        self.xlane("v_max_f32", "v28", "v29", 16)
        self.xlane("v_max_f32", "v28", "v29", 32)
        e("v_sub_f32 v29, v26, v28")
        e("v_exp_f32 v29, v29")
        e("s_nop 0")
        e("v_mul_f32 v29, v29, v27")
        e("s_nop 1")
        e("v_add_f32_dpp v29, v29, v29 row_ror:8 row_mask:0xf bank_mask:0xf")
        self.xlane("v_add_f32", "v29", "v30", 16)
        self.xlane("v_add_f32", "v29", "v30", 32)
        e("v_sub_f32 v30, v24, v28")
        e("v_exp_f32 v30, v30")
        e("v_rcp_f32 v31, v29")
        e("s_nop 0")
        e("v_mul_f32 v30, v30, v31")
        for r in range(8): e("v_mul_f32 v%d, v%d, v30" % (16+r, 16+r))
        e("v_cvt_pk_bf16_f32 v16, v16, v17")
        e("v_cvt_pk_bf16_f32 v17, v18, v19")
        e("v_cvt_pk_bf16_f32 v18, v20, v21")
        e("v_cvt_pk_bf16_f32 v19, v22, v23")
        e("s_lshl_b32 s27, s3, 10")
        e("s_add_u32 s27, s27, %d" % L_PP)
        e("v_lshl_add_u32 v6, v0, 4, s27")
        e("ds_write_b128 v6, v[16:19]")
        e("s_cmp_eq_u32 s3, 0")
        l4 = self.newlab("P")
        e("s_cbranch_scc0 %s" % l4)
        e("s_lshl_b32 s27, s65, 7")
        e("s_add_u32 s27, s27, 0x%x" % WS_ML)
        e("v_lshl_add_u32 v6, v0, 4, s27")
        e("v_mov_b32 v30, s24")
        e("v_mov_b32 v31, s24")
        e("s_mov_b64 exec, 0xff")
        e("buffer_store_dwordx4 v[28:31], v6, s[48:51], 0 offen sc1")
        e("s_mov_b64 exec, -1")
        self.lab(l4)
        e("s_waitcnt lgkmcnt(0)")
        self.arrive(F_P)
        self.stamp(6)
        e("v_and_b32 v4, 15, v0")
        e("v_lshrrev_b32 v5, 4, v0")
        e("v_lshrrev_b32 v6, 2, v4")
        e("v_lshl_add_u32 v7, v5, 2, v6")
        e("v_and_b32 v8, 7, v7")
        e("v_lshlrev_b32 v8, 1, v8")
        e("v_bfe_u32 v9, v4, 1, 1")
        e("s_lshl_b32 s27, s3, 1")
        e("v_add_u32 v9, s27, v9")
        e("v_xor_b32 v9, v9, v8")
        e("v_lshlrev_b32 v9, 4, v9")
        e("v_lshl_or_b32 v9, v7, 8, v9")
        e("v_and_b32 v8, 1, v4")
        e("v_lshl_or_b32 v9, v8, 3, v9")
        e("v_add_u32 v9, 0x%x, v9" % L_V)
        self.wait_lds(F_P, 8)
        e("v_lshlrev_b32 v6, 4, v0")
        e("v_add_u32 v6, %d, v6" % L_PP)
        for s in range(8):
            e("ds_read_b128 v[%d:%d], v6 offset:%d" % (64+4*s, 67+4*s, 1024*s))
        for s in range(8):
            self.wait_lds(F_PROG, 112 + 8*(s+1) + W)
            e("ds_read_b64_tr_b16 v[32:33], v9 offset:%d" % (8192*s))
            e("ds_read_b64_tr_b16 v[34:35], v9 offset:%d" % (8192*s + 4096))
            e("s_waitcnt lgkmcnt(0)")
            e("v_mfma_f32_16x16x32_bf16 v[28:31], v[32:35], v[%d:%d], %s" % (64+4*s, 67+4*s, "0" if s == 0 else "v[28:31]"))
        self.stamp(7)
        e("s_lshl_b32 s27, s65, 11")
        e("s_lshl_b32 s66, s3, 8")
        e("s_add_u32 s27, s27, s66")
        e("s_add_u32 s27, s27, 0x%x" % WS_OS)
        e("v_lshlrev_b32 v6, 5, v4")
        e("v_lshl_or_b32 v6, v5, 3, v6")
        e("v_add_u32 v6, s27, v6")
        e("s_mov_b32 s66, 0xfffffffe")
        e("s_nop 1")
        e("v_cvt_pk_bf16_f32 v28, v28, v29")
        e("v_cvt_pk_bf16_f32 v29, v30, v31")
        e("v_min_u32 v28, s66, v28")
        e("v_min_u32 v29, s66, v29")
        e("s_mov_b32 exec_lo, 0x00ff00ff")
        e("s_mov_b32 exec_hi, 0x00ff00ff")
        e("buffer_store_dwordx2 v[28:29], v6, s[48:51], 0 offen sc1")
        e("s_mov_b64 exec, -1")
        self.stamp(8)
        if self.stop_after == "attn": return self.finish()
        e("v_lshrrev_b32 v4, 5, v0")
        e("v_and_b32 v5, 31, v0")
        e("s_lshl_b32 s66, s61, 5")
        e("s_lshl_b32 s67, s3, 2")
        e("s_add_u32 s66, s66, s67")
        e("s_lshl_b32 s67, s66, 12")
        e("s_lshl_b32 s68, s62, 9")
        e("s_add_u32 s67, s67, s68")
        e("s_add_u32 s67, s67, 0x%x" % WS_OS)
        e("v_lshlrev_b32 v6, 4, v5")
        e("v_lshl_or_b32 v6, v4, 12, v6")
        e("v_add_u32 v6, s67, v6")
        e("s_mov_b32 s68, 0x2000")
        e("s_lshl_b32 s67, s66, 8")
        e("s_add_u32 s67, s67, 0x%x" % WS_ML)
        e("v_bfe_u32 v7, v5, 1, 3")
        e("v_lshlrev_b32 v7, 4, v7")
        e("v_lshl_or_b32 v7, v4, 8, v7")
        e("v_add_u32 v7, s67, v7")
        e("s_lshl_b32 s67, s3, 2")
        e("v_add_u32 v8, s67, v4")
        e("v_and_b32 v9, 15, v8")
        e("v_xor_b32 v9, v9, v5")
        e("v_lshlrev_b32 v9, 4, v9")
        e("v_lshl_or_b32 v9, v8, 9, v9")
        e("v_add_u32 v9, %d, v9" % L_OST)
        e("v_add_u32 v8, 2, v8")
        e("v_and_b32 v10, 15, v8")
        e("v_xor_b32 v10, v10, v5")
        e("v_lshlrev_b32 v10, 4, v10")
        e("v_lshl_or_b32 v10, v8, 9, v10")
        e("v_add_u32 v10, %d, v10" % L_OST)
        if self.hint_o:
            e("s_lshl_b32 s67, s66, 12")
            e("s_lshl_b32 s69, s62, 9")
            e("s_add_u32 s67, s67, s69")
            e("s_add_u32 s67, s67, 0x%x" % (WS_OS + 256))
            e("s_add_u32 s4, s22, s67")
            e("s_addc_u32 s5, s23, 0")
            lh = self.newlab("H"); lhd = self.newlab("HD")
            self.lab(lh)
            for j in range(4):
                for hf in range(2):
                    e("s_load_dword s%d, s[4:5], 0x%x glc" % (28 + 2*j + hf, j*4096 + hf*2048))
            e("s_waitcnt lgkmcnt(0)")
            e("s_max_u32 s36, s28, s29")
            for i in range(2, 8): e("s_max_u32 s36, s36, s%d" % (28 + i))
            e("s_cmp_eq_u32 s36, -1")
            e("s_cbranch_scc0 %s" % lhd)
            e("s_sub_u32 s26, s26, 1")
            e("s_cbranch_scc0 %s" % lh)
            e("s_mov_b32 s26, 0")
            self.lab(lhd)
        if self.ack_o: e("s_waitcnt vmcnt(0)")
        lo = self.newlab("O"); lod = self.newlab("OD")
        if self.stamps: e("s_mov_b32 s101, 0")
        self.lab(lo)
        if self.stamps: e("s_add_u32 s101, s101, 1")
        e("buffer_load_dwordx4 v[32:35], v6, s[48:51], 0 offen sc1")
        e("buffer_load_dwordx4 v[36:39], v6, s[48:51], 0 offen offset:2048 sc1")
        e("buffer_load_dwordx4 v[40:43], v6, s[48:51], s68 offen sc1")
        e("buffer_load_dwordx4 v[44:47], v6, s[48:51], s68 offen offset:2048 sc1")
        e("buffer_load_dwordx4 v[56:59], v7, s[48:51], 0 offen sc1")
        e("buffer_load_dwordx4 v[60:63], v7, s[48:51], 0 offen offset:128 sc1")
        e("buffer_load_dwordx4 v[64:67], v7, s[48:51], 0 offen offset:512 sc1")
        e("buffer_load_dwordx4 v[68:71], v7, s[48:51], 0 offen offset:640 sc1")
        e("s_waitcnt vmcnt(0)")
        e("v_max3_u32 v16, v32, v33, v34")
        for r in range(35, 47, 2): e("v_max3_u32 v16, v16, v%d, v%d" % (r, r+1))
        e("v_max_u32 v16, v16, v47")
        e("v_xor_b32 v11, s24, v58")
        for r in (62, 66, 70): e("v_bitop3_b32 v11, v11, v%d, s24 bitop3:0xf6" % r)
        e("v_cmp_eq_u32 vcc, -1, v16")
        e("v_cmp_ne_u32 s[36:37], 0, v11")
        e("s_or_b64 s[36:37], vcc, s[36:37]")
        e("s_cbranch_scc0 %s" % lod)
        e("s_sub_u32 s26, s26, 1")
        e("s_cbranch_scc0 %s" % lo)
        e("s_mov_b32 s26, 0")
        self.lab(lod)
        for (a, bb, wa, wb) in ((56, 60, 12, 13), (64, 68, 14, 11)):
            e("v_max_f32 v16, v%d, v%d" % (a, bb))
            e("v_sub_f32 v17, v%d, v16" % a)
            e("v_sub_f32 v18, v%d, v16" % bb)
            e("v_exp_f32 v17, v17")
            e("v_exp_f32 v18, v18")
            e("s_nop 0")
            e("v_mul_f32 v17, v17, v%d" % (a+1))
            e("v_mul_f32 v18, v18, v%d" % (bb+1))
            e("v_add_f32 v19, v17, v18")
            e("v_rcp_f32 v19, v19")
            e("s_nop 0")
            e("v_mul_f32 v%d, v17, v19" % wa)
            e("v_mul_f32 v%d, v18, v19" % wb)
        self.stamp(9)
        e("s_mov_b32 s66, 0xffff0000")
        for (u, a, bb, wa, wb, dst) in ((0, 32, 36, 12, 13, 48), (1, 40, 44, 14, 11, 52)):
            for j in range(4):
                e("v_lshlrev_b32 v16, 16, v%d" % (a+j))
                e("v_and_b32 v17, s66, v%d" % (a+j))
                e("v_lshlrev_b32 v18, 16, v%d" % (bb+j))
                e("v_and_b32 v19, s66, v%d" % (bb+j))
                e("v_mul_f32 v16, v16, v%d" % wa)
                e("v_mul_f32 v17, v17, v%d" % wa)
                e("v_fma_f32 v16, v18, v%d, v16" % wb)
                e("v_fma_f32 v17, v19, v%d, v17" % wb)
                e("v_cvt_pk_bf16_f32 v%d, v16, v17" % (dst+j))
        e("ds_write_b128 v9, v[48:51]")
        e("ds_write_b128 v10, v[52:55]")
        e("s_waitcnt lgkmcnt(0)")
        self.arrive(F_O)
        self.proj(L_WO, L_OST, None)
        e("s_lshl_b32 s66, s63, 4")
        e("s_and_b32 s67, s3, 1")
        e("s_lshl_b32 s67, s67, 3")
        e("s_add_u32 s66, s66, s67")
        e("s_lshl_b32 s66, s66, 13")
        e("s_lshl_b32 s67, s64, 9")
        e("s_add_u32 s66, s66, s67")
        e("s_lshr_b32 s67, s3, 1")
        e("s_lshl_b32 s67, s67, 6")
        e("s_add_u32 s66, s66, s67")
        e("s_add_u32 s66, s66, 0x%x" % WS_PS)
        e("v_lshrrev_b32 v14, 1, v4")
        e("v_lshlrev_b32 v14, 13, v14")
        e("v_and_b32 v16, 1, v4")
        e("v_lshl_or_b32 v14, v16, 8, v14")
        e("v_lshl_or_b32 v14, v5, 4, v14")
        e("v_add_u32 v14, s66, v14")
        e("v_mov_b32 v15, s25")
        self.wait_lds(F_O, 8)
        self.stamp(10)
        waits = {}
        for s in range(8):
            waits[s] = (lambda s=s: self.wait_lds(F_PROG, 176 + 4*(s+1) + W)) if s in (0, 4, 7) else None
        waits = {0: lambda: self.wait_lds(F_PROG, 176 + 32 + W)}
        self.proj_compute(waits)
        e("s_nop 7")
        for r in range(4): e("v_and_or_b32 v%d, v%d, s70, v15" % (28+r, 28+r))
        e("buffer_store_dwordx4 v[28:31], v14, s[48:51], 0 offen sc1")
        self.stamp(11)
        e("s_cmp_lt_u32 s3, 4")
        e("s_cbranch_scc0 L_wdone")
        e("s_lshl_b32 s66, s2, 13")
        e("s_lshl_b32 s67, s3, 7")
        e("s_add_u32 s66, s66, s67")
        e("s_add_u32 s66, s66, 0x%x" % WS_PS)
        e("v_and_b32 v4, 7, v0")
        e("v_lshrrev_b32 v5, 3, v0")
        e("v_lshlrev_b32 v6, 4, v4")
        e("v_lshl_or_b32 v6, v5, 9, v6")
        e("v_add_u32 v6, s66, v6")
        e("s_mov_b32 s67, 0x1000")
        if self.ack_p: e("s_waitcnt vmcnt(0)")
        lf = self.newlab("F"); lfd = self.newlab("FD")
        if self.stamps: e("s_mov_b32 s71, 0")
        self.lab(lf)
        if self.stamps: e("s_add_u32 s71, s71, 1")
        e("buffer_load_dwordx4 v[16:19], v6, s[48:51], 0 offen sc1")
        e("buffer_load_dwordx4 v[20:23], v6, s[48:51], s67 offen sc1")
        e("s_waitcnt vmcnt(0)")
        e("v_xor_b32 v8, v16, v15")
        for r in range(17, 24): e("v_bitop3_b32 v8, v8, v%d, v15 bitop3:0xf6" % r)
        e("v_and_b32 v8, 0xff, v8")
        e("v_cmp_ne_u32 vcc, 0, v8")
        e("s_cbranch_vccz %s" % lfd)
        e("s_sub_u32 s26, s26, 1")
        e("s_cbranch_scc0 %s" % lf)
        e("s_mov_b32 s26, 0")
        self.lab(lfd)
        self.stamp(12)
        for r in range(4): e("v_add_f32 v%d, v%d, v%d" % (16+r, 16+r, 20+r))
        e("s_nop 0")
        for r in range(4): e("v_add_f32_dpp v%d, v%d, v%d row_ror:8 row_mask:0xf bank_mask:0xf" % (16+r, 16+r, 16+r))
        for bit in (16, 32):
            for r in range(4): e("v_mov_b32 v%d, v%d" % (20+r, 16+r))
            e("s_nop 0")
            for r in range(4): e("v_permlane%d_swap_b32 v%d, v%d" % (bit, 16+r, 20+r))
            for r in range(4): e("v_add_f32 v%d, v%d, v%d" % (16+r, 16+r, 20+r))
        e("v_cvt_pk_bf16_f32 v16, v16, v17")
        e("v_cvt_pk_bf16_f32 v17, v18, v19")
        e("s_and_b32 s66, s2, 15")
        e("s_lshl_b32 s66, s66, 12")
        e("s_lshr_b32 s67, s3, 1")
        e("s_lshl_b32 s67, s67, 11")
        e("s_add_u32 s66, s66, s67")
        e("s_lshr_b32 s67, s2, 4")
        e("s_lshl_b32 s67, s67, 7")
        e("s_add_u32 s66, s66, s67")
        e("s_and_b32 s67, s3, 1")
        e("s_lshl_b32 s67, s67, 6")
        e("s_add_u32 s66, s66, s67")
        e("v_lshl_add_u32 v6, v4, 3, s66")
        e("s_mov_b64 exec, 0xff")
        e("buffer_store_dwordx2 v[16:17], v6, s[52:55], 0 offen")
        e("s_mov_b64 exec, -1")
        return self.finish()

    def qk_addrs(self):
        e = self.e
        assert L_QS % 256 == 0
        e("v_xor_b32 v9, 64, v8")
        e("v_xor_b32 v10, 0x80, v8")
        e("v_xor_b32 v11, 0xc0, v8")
        e("v_xor_b32 v13, 64, v12")
        e("v_xor_b32 v14, 0x80, v12")
        e("v_xor_b32 v15, 0xc0, v12")

    def finish(self):
        e = self.e
        self.lab("L_wdone")
        e("s_or_b32 s27, s2, s3")
        e("s_cmp_eq_u32 s27, 0")
        l = self.newlab("E")
        e("s_cbranch_scc0 %s" % l)
        e("v_mov_b32 v4, %d" % WS_E)
        e("v_mov_b32 v5, s24")
        e("s_mov_b64 exec, 1")
        e("buffer_store_dword v5, v4, s[48:51], 0 offen sc1")
        e("s_mov_b64 exec, -1")
        self.lab(l)
        self.stamp(13)
        self.write_stamps()
        e("s_endpgm")

if __name__ == "__main__":
    import argparse
    ap = argparse.ArgumentParser()
    ap.add_argument("-o", default="/dev/stdout")
    ap.add_argument("--stamps", action="store_true")
    ap.add_argument("--W", type=int, default=32)
    ap.add_argument("--stop", default=None)
    a = ap.parse_args()
    open(a.o, "w").write(G(W=a.W, stamps=a.stamps, stop_after=a.stop).gen())
```

```python
import sys
sys.path.insert(0, "dev")
import gen_k
out = sys.argv[1]; kw = eval("dict(%s)" % (sys.argv[2] if len(sys.argv) > 2 else ""))
hdr = open('standalone__sliding_block_cached__sampling.s.ref').read().split('\n')
keep = []
for l in hdr:
    if l.startswith('; Override launch geometry'): break
    keep.append(l)
base = kw.pop('base', 0)
gen_k.set_base(base)
open(out, 'w').write("\n".join(keep) + "\n" + gen_k.G(**kw).gen())
```
